```python
import torch

def _softmax(x, axis=-1):
    return torch.softmax(x, dim=axis)
def _gelu(x):
    return torch.nn.functional.gelu(x, approximate="tanh")
def _silu(x):
    return torch.nn.functional.silu(x)
def _sigmoid(x):
    return torch.sigmoid(x)
def _layernorm(x, axis=-1, eps=1e-5):
    m = x.mean(dim=axis, keepdim=True)
    v = x.var(dim=axis, keepdim=True, unbiased=False)
    return (x - m) / torch.sqrt(v + eps)
def _scatter_add(tgt, idx, src, axis=0):
    return tgt.clone().index_add_(axis, idx, src)
def _segment_sum(src, seg, n):
    out = torch.zeros((n,) + src.shape[1:], dtype=src.dtype)
    return out.index_add_(0, seg, src)
def _pad(x, pw):
    flat = tuple(v for pair in reversed(pw) for v in pair)
    return torch.nn.functional.pad(x, flat)

kernel_name = 'gated_mix__ssm_conv_s4__dense_activation_relu__prompt'

def setup_inputs():

    _w = (lambda a: (lambda t: t.to(torch.bfloat16) if t.is_floating_point() else t)(torch.as_tensor(a)))
    def _A_setup():
        B, L, D, N = 1, 2048, 640, 192
        A_re = -(lambda _x: torch.exp(torch.as_tensor(_x)))((lambda *s: torch.randn(*s, dtype=torch.bfloat16) * 6.4)(D, N))
        A_im = torch.pi * (lambda *s: torch.randn(*s, dtype=torch.bfloat16) * 0.1)(D, N)
        B_re = (lambda *s: torch.randn(*s, dtype=torch.bfloat16) * 0.2)(D, N)
        B_im = (lambda *s: torch.randn(*s, dtype=torch.bfloat16) * 0.2)(D, N)
        C_re = (lambda *s: torch.randn(*s, dtype=torch.bfloat16) * 0.2)(D, N)
        C_im = (lambda *s: torch.randn(*s, dtype=torch.bfloat16) * 0.2)(D, N)
        log_dt = (lambda *s: torch.randn(*s, dtype=torch.bfloat16) * 0.1)(D) * 0.5 - 4.0
        Dskip = (lambda *s: torch.randn(*s, dtype=torch.bfloat16) * 0.1)(D)
        return {
            "u": _w((lambda *s: torch.randn(*s, dtype=torch.bfloat16) * 0.05)(B, L, D)),
            "A_re": _w(A_re),
            "A_im": _w(A_im),
            "B_re": _w(B_re),
            "B_im": _w(B_im),
            "C_re": _w(C_re),
            "C_im": _w(C_im),
            "log_dt": _w(log_dt),
            "Dskip": _w(Dskip),
        }
    _A_in = _A_setup()

    def _B_setup():
        B, S, D, Dff = 1, 2048, 640, 1536
        return {
            "x": _w((lambda *s: torch.randn(*s, dtype=torch.bfloat16) * 0.05)(B, S, D)),
            "w1": _w((lambda *s: torch.randn(*s, dtype=torch.bfloat16) * 0.05)(D, Dff)),
            "w2": _w((lambda *s: torch.randn(*s, dtype=torch.bfloat16) * 0.05)(Dff, D)),
        }
    _B_in = _B_setup()

    return {
        "A_u": _A_in["u"],
        "A_A_re": _A_in["A_re"],
        "A_A_im": _A_in["A_im"],
        "A_B_re": _A_in["B_re"],
        "A_B_im": _A_in["B_im"],
        "A_C_re": _A_in["C_re"],
        "A_C_im": _A_in["C_im"],
        "A_log_dt": _A_in["log_dt"],
        "A_Dskip": _A_in["Dskip"],
        "B_x": _B_in["x"],
        "B_w1": _B_in["w1"],
        "B_w2": _B_in["w2"],
        "gate_w": _w((lambda *s: torch.randn(*s, dtype=torch.bfloat16) * 0.05)(640) * 16.0),
    }

def reference(A_u, A_A_re, A_A_im, A_B_re, A_B_im, A_C_re, A_C_im, A_log_dt, A_Dskip, B_x, B_w1, B_w2, gate_w):
    def _A_ref(u, A_re, A_im, B_re, B_im, C_re, C_im, log_dt, Dskip):
        Bsz, L, D = u.shape
        dt = torch.exp(log_dt)[:, None]
        A = A_re + 1j * A_im
        Bc = B_re + 1j * B_im
        Cc = C_re + 1j * C_im
        logdA = dt * A
        dB = dt * Bc
        l = (lambda x, dt: x.to(dt))(torch.arange(L), A_re.dtype)
        P = torch.exp(logdA[:, :, None] * l[None, None, :])
        K = torch.einsum("dn,dnl,dn->dl", Cc, P, dB).real
        L2 = 2 * L
        Kp = _pad(K, ((0, 0), (0, L)))
        up = (lambda x, *d: x.permute(*d))(u, 0, 2, 1)
        up = _pad(up, ((0, 0), (0, 0), (0, L)))
        Kf = (lambda x, axes=(-2,-1): torch.fft.rfft2(x.float(), dim=axes))(Kp[:, None, :], axes=(-2, -1))
        Uf = (lambda x, axes=(-2,-1): torch.fft.rfft2(x.float(), dim=axes))(up[:, :, None, :], axes=(-2, -1))
        Yf = Uf * Kf[None, :, :, :]
        y = (lambda x, s, axes=(-2,-1): torch.fft.irfft2(x, s=s, dim=axes).to(torch.bfloat16))(Yf, (1, L2), axes=(-2, -1))[:, :, 0, :L]
        y = (lambda x, *d: x.permute(*d))(y, 0, 2, 1) + u * Dskip[None, None, :]
        return y

    def _B_ref(x, w1, w2):
        h = torch.einsum("bsd,df->bsf", x, w1)
        zero = torch.zeros_like(h)
        h = torch.maximum(h, zero)
        return torch.einsum("bsf,fd->bsd", h, w2)

    x = A_u
    g = _sigmoid((x * gate_w).sum(-1, keepdims=True))
    a = _A_ref(x, A_A_re, A_A_im, A_B_re, A_B_im, A_C_re, A_C_im, A_log_dt, A_Dskip)
    b = _B_ref(x, B_w1, B_w2)
    return g * a + (1 - g) * b
```

```python
import re

TRANS = ("v_exp_f32", "v_log_f32", "v_rcp_f32", "v_rsq_f32", "v_sqrt_f32", "v_sin_f32", "v_cos_f32",
         "v_rcp_iflag_f32")


def v(i, n=1):
    assert 0 <= i and i + n <= 256, (i, n)
    return "v%d" % i if n == 1 else "v[%d:%d]" % (i, i + n - 1)


def s(i, n=1):
    assert 0 <= i and i + n <= 102, (i, n)
    return "s%d" % i if n == 1 else "s[%d:%d]" % (i, i + n - 1)


_reg_re = re.compile(r"^(-|\|)?(abs\()?([vsa])(\d+|\[(\d+):(\d+)\])\)?\|?$")


def regs_of(tok):
    tok = tok.strip()
    if tok in ("vcc",):
        return {("s", "vcc_lo"), ("s", "vcc_hi")}
    if tok in ("vcc_lo", "vcc_hi", "m0", "exec_lo", "exec_hi"):
        return {("s", tok)}
    if tok == "exec":
        return {("s", "exec_lo"), ("s", "exec_hi")}
    m = _reg_re.match(tok)
    if not m:
        return set()
    k = m.group(3)
    if m.group(5) is not None:
        return {(k, i) for i in range(int(m.group(5)), int(m.group(6)) + 1)}
    return {(k, int(m.group(4)))}


class Ins:
    def __init__(self, text):
        self.text = text
        self.label = None
        self.target = None
        self.uncond = False
        self.end = False
        t = text.split(";")[0].strip()
        if t.endswith(":"):
            self.label = t[:-1]
            self.cls = "label"
            self.states = 0
            self.dst = set()
            self.src = set()
            return
        parts = t.split(None, 1)
        mn = parts[0]
        self.mn = mn
        rest = parts[1] if len(parts) > 1 else ""
        ops = []
        depth = 0
        cur = ""
        for ch in rest:
            if ch in "[(":
                depth += 1
            if ch in "])":
                depth -= 1
            if ch == "," and depth == 0:
                ops.append(cur.strip())
                cur = ""
            else:
                cur += ch
        if cur.strip():
            ops.append(cur.strip())
        mods = ""
        if ops:
            last = ops[-1].split(None, 1)
            ops[-1] = last[0]
            if len(last) > 1:
                mods = last[1]
        self.ops = ops
        self.mods = mods
        self.states = 1
        R = [regs_of(o) for o in ops]
        allr = set().union(*R) if R else set()
        self.dst = set()
        self.src = set()
        self.srcC = set()
        self.srcAB = set()
        self.dpp = ("_dpp" in mn) or ("row_" in mods) or ("wave_" in mods) or ("quad_perm" in mods)
        self.passes = 0
        base = mn.replace("_e32", "").replace("_e64", "").replace("_dpp", "").replace("_sdwa", "")
        self.base = base
        if mn.startswith("v_mfma"):
            self.cls = "mfma"
            self.dst = R[0]
            self.srcAB = R[1] | R[2]
            self.srcC = R[3]
            self.src = self.srcAB | self.srcC
            self.passes = 8 if "32x32x16" in mn else 4
            assert "32x32x16" in mn or "16x16x32" in mn
        elif mn.startswith("v_"):
            self.cls = "valu"
            if base.startswith("v_cmp"):
                self.dst = R[0]
                self.src = set().union(*R[1:])
            elif base.startswith("v_permlane") and "swap" in base:
                self.dst = R[0] | R[1]
                self.src = R[0] | R[1]
            elif base in ("v_add_co_u32", "v_sub_co_u32", "v_addc_co_u32", "v_subb_co_u32"):
                self.dst = R[0] | R[1]
                self.src = set().union(*R[2:])
            elif base == "v_nop":
                pass
            else:
                self.dst = R[0]
                self.src = set().union(*R[1:]) if len(R) > 1 else set()
                if base in ("v_fmac_f32", "v_dot2c_f32_bf16", "v_writelane_b32", "v_pk_fmac_f16") or self.dpp:
                    self.src |= R[0]
                if base == "v_cndmask_b32" and len(ops) == 3:
                    self.src |= regs_of("vcc")
            self.trans = base in TRANS
        elif mn.startswith("ds_"):
            self.cls = "ds"
            if mn.startswith("ds_read") or mn.startswith("ds_bpermute") or mn.startswith("ds_swizzle"):
                self.dst = R[0]
                self.src = set().union(*R[1:])
            else:
                self.src = allr
        elif mn.startswith("buffer_") or mn.startswith("global_"):
            self.cls = "vmem"
            self.lds = bool(re.search(r"\blds\b", mods)) or "load_lds" in mn
            if "load" in mn and not self.lds:
                self.dst = R[0]
                self.src = set().union(*R[1:])
                if "d16" in mn:
                    self.src |= R[0]
            else:
                self.src = allr
            if self.lds:
                self.src |= {("s", "m0")}
            self.widestore = ("store" in mn) and ("x4" in mn or "x3" in mn)
            self.data = R[0] if mn.startswith("buffer_store") else (R[1] if mn.startswith("global_store") else set())
        elif mn.startswith("s_load") or mn.startswith("s_memtime") or mn.startswith("s_memrealtime") or mn.startswith("s_buffer_load"):
            self.cls = "smem"
            self.dst = R[0]
            self.src = set().union(*R[1:]) if len(R) > 1 else set()
        elif mn.startswith("s_"):
            self.cls = "salu"
            if mn == "s_nop":
                self.states = int(ops[0], 0) + 1
            elif mn in ("s_branch",):
                self.target = ops[0]
                self.uncond = True
            elif mn.startswith("s_cbranch"):
                self.target = ops[0]
            elif mn == "s_endpgm":
                self.end = True
            elif mn.startswith("s_cmp") or mn in ("s_waitcnt", "s_barrier", "s_setprio", "s_sleep", "s_bitcmp0_b32", "s_bitcmp1_b32"):
                self.src = allr
            else:
                self.dst = R[0] if R else set()
                self.src = set().union(*R[1:]) if len(R) > 1 else set()
                if "saveexec" in mn:
                    self.dst |= regs_of("exec")
        else:
            raise ValueError("unknown instr: " + text)


def need(p, c):
    n = 0
    if p.cls == "label" or c.cls == "label":
        return 0
    pv = {r for r in p.dst if r[0] == "v"}
    ps = {r for r in p.dst if r[0] == "s"}
    if p.cls == "valu":
        if c.cls == "mfma" and (pv & c.src):
            n = max(n, 2)
        if c.cls == "valu":
            if c.dpp and (pv & c.src):
                n = max(n, 2)
            if c.base in ("v_readlane_b32", "v_readfirstlane_b32") and (pv & c.src):
                n = max(n, 1)
            if c.base.startswith("v_permlane") and (pv & c.src):
                n = max(n, 2)
            if p.trans and not c.trans and (pv & c.src):
                n = max(n, 1)
            if p.trans and c.trans and (pv & c.src):
                n = max(n, 1)
            if ps & c.src:
                n = max(n, 4 if c.base in ("v_readlane_b32", "v_writelane_b32") else 2)
            if ("op_sel" in p.mods and not p.base.startswith("v_pk")) and (pv & (c.src | c.dst)):
                n = max(n, 1)
        if p.base.startswith("v_dot") and c.cls in ("valu", "vmem", "ds", "mfma") and (pv & (c.src | c.dst)):
            same = c.cls == "valu" and c.base == p.base
            onlyC = same and not (pv & (regs_of(c.ops[1]) | regs_of(c.ops[2])))
            if not onlyC:
                n = max(n, 3)
        if c.cls == "mfma" and p.trans and (pv & c.src):
            n = max(n, 2)
        if c.cls == "vmem" and (ps & c.src):
            n = max(n, 5)
        if c.cls == "salu" and (ps & c.src):
            n = max(n, 1)
        if c.cls in ("vmem", "ds") and p.trans and (pv & c.src):
            n = max(n, 1)
    if p.cls == "mfma":
        big = p.passes == 8
        if c.cls == "mfma":
            if p.dst & c.srcAB:
                n = max(n, 12 if big else 8)
            if p.dst & c.srcC:
                if not (p.dst == c.srcC and p.passes == c.passes):
                    n = max(n, 10 if big else 6)
            elif p.dst & c.dst:
                n = max(n, 12 if big else 8)
        elif c.cls == "valu":
            if p.dst & (c.src | c.dst):
                n = max(n, 12 if big else 8)
            if p.srcC & c.dst:
                n = max(n, 7 if big else 3)
        elif c.cls in ("vmem", "ds"):
            if p.dst & (c.src | c.dst):
                n = max(n, 12 if big else 8)
    if p.cls == "salu":
        if ("s", "m0") in p.dst and c.cls == "vmem" and c.lds:
            n = max(n, 1)
    if p.cls == "vmem" and p.widestore:
        if p.data & c.dst:
            n = max(n, 2 if c.cls == "valu" else 1)
    if p.cls == "ds" and p.mn in ("ds_write_b128", "ds_write_b96") and c.cls == "valu":
        dat = regs_of(p.ops[1])
        if dat & c.dst:
            n = max(n, 1)
    return n


class Asm:
    def __init__(self):
        self.ins = []
        self.uid = 0

    def __call__(self, text):
        for line in text.strip().split("\n"):
            line = line.strip()
            if not line or line.startswith(";"):
                continue
            self.ins.append(Ins(line))

    def label(self, name):
        self.ins.append(Ins(name + ":"))

    def newlabel(self, base="L"):
        self.uid += 1
        return "%s_%d" % (base, self.uid)

    def pad(self, verbose=False):
        MAXD = 13
        total = 0
        start = 0
        while True:
            ins = self.ins
            lab = {x.label: i for i, x in enumerate(ins) if x.label}
            preds = [[] for _ in ins]
            for i, x in enumerate(ins):
                if x.target is not None:
                    if x.target not in lab:
                        raise ValueError("unknown label " + x.target)
                    preds[lab[x.target]].append(i)
                if i + 1 < len(ins) and not x.uncond and not x.end:
                    preds[i + 1].append(i)
            inserted = False
            for i in range(start, len(ins)):
                c = ins[i]
                if c.cls == "label":
                    continue
                worst = 0
                who = None
                stack = [(p, 0) for p in preds[i]]
                seen = {}
                while stack:
                    j, d = stack.pop()
                    if j in seen and seen[j] <= d:
                        continue
                    seen[j] = d
                    p = ins[j]
                    r = need(p, c) - d
                    if r > worst:
                        worst = r
                        who = p
                    nd = d + p.states
                    if nd < MAXD:
                        for q in preds[j]:
                            stack.append((q, nd))
                if worst > 0:
                    if verbose:
                        print("pad %d before [%s] for [%s]" % (worst, c.text, who.text))
                    ins.insert(i, Ins("s_nop %d" % (worst - 1)))
                    total += 1
                    start = i + 1
                    inserted = True
                    break
            if not inserted:
                break
        return total

    def text(self):
        out = []
        for x in self.ins:
            out.append(x.text if x.label else "    " + x.text)
        return "\n".join(out) + "\n"

    def maxreg(self, k):
        m = -1
        for x in self.ins:
            for r in x.dst | x.src:
                if r[0] == k and isinstance(r[1], int):
                    m = max(m, r[1])
        return m
```

```python
from asmlib import *

REG = 20480
KOFF = 4608
OOFF = 4160

HROW = [0, 1, 2, 3, 4, 5, 6, 7, 256, 258, 260, 512, 260, 262, 264, 768, 516, 1024, 1536, 2048, 772, 1280, 1792, None]


def cmul(d, x, y, conj=False):
    assert d != x and d != y
    if conj:
        return ["v_pk_mul_f32 %s, %s, %s op_sel_hi:[0,1] neg_hi:[1,0]" % (v(d, 2), v(x, 2), v(y, 2)),
                "v_pk_fma_f32 %s, %s, %s, %s op_sel:[1,1,0] op_sel_hi:[1,0,1] neg_lo:[1,0,0] neg_hi:[1,0,0]" % (
                    v(d, 2), v(x, 2), v(y, 2), v(d, 2))]
    return ["v_pk_mul_f32 %s, %s, %s op_sel_hi:[0,1]" % (v(d, 2), v(x, 2), v(y, 2)),
            "v_pk_fma_f32 %s, %s, %s, %s op_sel:[1,1,0] op_sel_hi:[1,0,1] neg_lo:[1,0,0]" % (
                v(d, 2), v(x, 2), v(y, 2), v(d, 2))]


def emit_group(a, muls):
    for m in muls:
        a(m[0])
    for m in muls:
        a(m[1])


def conv(a, cfg, G):
    fused = cfg["fused"]
    S_W, S_X, S_J = G.S_W, G.S_X, G.S_J
    sc = " sc1" if fused else ""
    S_CG, S_D, S_B = 8, 9, 10
    a("s_mul_i32 s8, %s, 10" % s(S_X))
    a("s_add_u32 s8, s8, %s" % s(S_J))
    a("s_sub_u32 s8, s8, 22")
    a("s_lshl_b32 s9, s8, 3")
    a("s_add_u32 s9, s9, %s" % s(S_W))
    a("s_mul_i32 s6, s9, 384")
    a("v_lshl_add_u32 v2, v1, 2, s6")
    a("s_lshl_b32 s7, s9, 1")
    a("v_mov_b32 v4, s7")
    a("s_add_u32 s6, s6, 256")
    a("v_lshl_add_u32 v3, v1, 1, s6")
    a("global_load_ushort v20, v4, %s" % s(G.P_LDT, 2))
    ptrs = [G.P_ARE, G.P_AIM, G.P_BRE, G.P_BIM, G.P_CRE, G.P_CIM]
    for i, p in enumerate(ptrs):
        a("global_load_dword %s, v2, %s" % (v(8 + i), s(p, 2)))
    for i, p in enumerate(ptrs):
        a("global_load_ushort %s, v3, %s" % (v(14 + i), s(p, 2)))
    a("global_load_ushort v21, v4, %s" % s(G.P_DSK, 2))
    a("s_movk_i32 s6, 5120")
    a("v_mul_u32_u24 v5, s6, v0")
    a("s_lshl_b32 s7, s8, 4")
    a("v_add_u32 v5, s7, v5")
    for r in range(4):
        a("global_load_dwordx4 %s, v5, %s offset:%d" % (v(24 + 4 * r, 4), s(G.P_U, 2), 1280 * r))
    a("s_mul_i32 s10, %s, %d" % (s(S_W), REG))
    a("v_mov_b32 v6, 0")
    a("v_mov_b32 v7, 0")
    a("v_lshl_add_u32 v2, v1, 3, s10")
    a("ds_write_b64 v2, v[6:7] offset:4096")
    a("s_add_u32 s11, s10, %d" % KOFF)
    a("s_movk_i32 s6, 240")
    a("v_mul_u32_u24 v2, s6, v1")
    a("v_add_u32 v2, s11, v2")
    a("v_bfe_u32 v3, v1, 2, 2")
    a("v_lshrrev_b32 v4, 5, v1")
    a("v_lshl_add_u32 v3, v3, 2, v4")
    a("v_mul_u32_u24 v3, s6, v3")
    a("v_bfe_u32 v4, v1, 4, 1")
    a("v_lshl_add_u32 v3, v4, 5, v3")
    a("v_and_b32 v4, 3, v1")
    a("v_lshl_add_u32 v3, v4, 3, v3")
    a("v_add_u32 v3, s11, v3")
    G.srd(a, G.R_A, G.P_WS, G.A_SZ, G.A_OFF)
    if fused:
        G.srd(a, G.R_G, G.P_WS, G.G_SZ, G.G_OFF)
        G.srd(a, G.R_D, G.P_DBG, 256)
    D = 232
    for i in range(16):
        a("v_mov_b32 %s, 0" % v(D + i))
    a("s_mov_b32 s12, 0x3fb8aa3b")
    a("s_mov_b32 s13, 0x32a57060")
    a("s_mov_b32 s14, 0x43b8aa3b")
    a("s_mov_b32 s15, 0x4222f983")
    a("s_waitcnt vmcnt(17)")
    a("v_lshlrev_b32 v20, 16, v20")
    a("v_mul_f32 v22, s12, v20")
    a("v_fma_f32 v23, v20, s12, -v22")
    a("v_exp_f32 v22, v22")
    a("v_fma_f32 v23, v20, s13, v23")
    a("v_mul_f32 v23, 0x3f317218, v23")
    a("v_fma_f32 v22, v22, v23, v22")
    a("v_cvt_pk_bf16_f32 v22, v22, v22")
    a("v_lshlrev_b32 v22, 16, v22")
    P = 64
    a("s_waitcnt vmcnt(11)")
    for i in range(6):
        a("v_lshlrev_b32 %s, 16, %s" % (v(P + i), v(8 + i)))
        a("v_and_b32 %s, 0xffff0000, %s" % (v(P + 6 + i), v(8 + i)))
    a("s_waitcnt vmcnt(5)")
    for i in range(6):
        a("v_lshlrev_b32 %s, 16, %s" % (v(P + 12 + i), v(14 + i)))
    SEED = 40
    T = 84
    for b in range(3):
        a("v_pk_mul_f32 %s, v[22:23], %s op_sel_hi:[0,1]" % (v(P + 6 * b, 2), v(P + 6 * b, 2)))
        a("v_pk_mul_f32 %s, v[22:23], %s op_sel_hi:[0,1]" % (v(P + 6 * b + 2, 2), v(P + 6 * b + 2, 2)))
    for b in range(3):
        t = T + 10 * b
        a("v_mul_f32 %s, s12, %s" % (v(t), v(P + 6 * b)))
        a("v_mul_f32 %s, s14, %s" % (v(t + 2), v(P + 6 * b)))
        a("v_mul_f32 %s, 0.15915494, %s" % (v(t + 4), v(P + 6 * b + 1)))
        a("v_mul_f32 %s, s15, %s" % (v(t + 5), v(P + 6 * b + 1)))
    for b in range(3):
        t = T + 10 * b
        a("v_rndne_f32 %s, %s" % (v(t + 6), v(t + 4)))
        a("v_rndne_f32 %s, %s" % (v(t + 7), v(t + 5)))
        a("v_exp_f32 %s, %s" % (v(t), v(t)))
        a("v_exp_f32 %s, %s" % (v(t + 2), v(t + 2)))
        a("v_sub_f32 %s, %s, %s" % (v(t + 4), v(t + 4), v(t + 6)))
        a("v_sub_f32 %s, %s, %s" % (v(t + 5), v(t + 5), v(t + 7)))
    for b in range(3):
        t = T + 10 * b
        m = cmul(SEED + 6 * b, P + 6 * b + 4, P + 6 * b + 2)
        a("v_cos_f32 %s, %s" % (v(t + 6), v(t + 4)))
        a(m[0])
        a("v_sin_f32 %s, %s" % (v(t + 7), v(t + 4)))
        a(m[1])
        a("v_cos_f32 %s, %s" % (v(t + 8), v(t + 5)))
        a("v_sin_f32 %s, %s" % (v(t + 9), v(t + 5)))
    for b in range(3):
        t = T + 10 * b
        a("v_pk_mul_f32 %s, %s, %s op_sel_hi:[0,1]" % (v(SEED + 6 * b + 2, 2), v(t, 2), v(t + 6, 2)))
        a("v_pk_mul_f32 %s, %s, %s op_sel_hi:[0,1]" % (v(SEED + 6 * b + 4, 2), v(t + 2, 2), v(t + 8, 2)))
    G.stamp(a, 1, cfg)
    W, Q1, PP, Q2, Q4 = SEED, SEED + 2, SEED + 4, 58, 60
    XB, YB, ST = 64, 112, 176
    xr = {0: W}
    for rho, h in enumerate(HROW):
        if h is not None and h not in xr:
            xr[h] = XB + 2 * rho

    def Y(k):
        return YB + 2 * k

    a("s_mov_b32 s80, 3")
    emit_group(a, [cmul(Q2, Q1, Q1)])
    emit_group(a, [cmul(Q4, Q2, Q2)])
    L = a.newlabel("KG")
    a.label(L)
    X = xr
    emit_group(a, [cmul(Y(1), Q4, Q4, conj=True), cmul(X[1], W, Q1), cmul(X[2], W, Q2), cmul(X[4], W, Q4),
                   cmul(X[256], W, PP)])
    emit_group(a, [cmul(Y(2), Y(1), Y(1)), cmul(X[3], X[1], Q2), cmul(X[5], X[1], Q4), cmul(X[6], X[2], Q4),
                   cmul(X[512], X[256], PP), cmul(X[258], X[2], PP), cmul(X[260], X[4], PP)])
    emit_group(a, [cmul(Y(4), Y(2), Y(2)), cmul(Y(3), Y(2), Y(1)), cmul(X[7], X[3], Q4), cmul(X[768], X[512], PP),
                   cmul(X[262], X[6], PP), cmul(X[264], X[260], Q4), cmul(X[516], X[260], PP)])
    emit_group(a, [cmul(Y(8), Y(4), Y(4)), cmul(X[1024], X[768], PP), cmul(X[772], X[516], PP)] +
               [cmul(Y(4 + k), Y(4), Y(k)) for k in range(1, 4)])
    emit_group(a, [cmul(Y(16), Y(8), Y(8)), cmul(X[1280], X[1024], PP)] +
               [cmul(Y(8 + k), Y(8), Y(k)) for k in range(1, 8)])

    def pack(vals, dst):
        out = []
        for i in range(0, len(vals), 2):
            out.append("v_cvt_pk_bf16_f32 %s, %s, %s" % (v(dst + i // 2), vals[i], vals[i + 1]))
        return out

    def xv(rho, c):
        h = HROW[rho]
        if h is None:
            h = HROW[rho - 1]
        return v(X[h] + c)

    def yv(k, c):
        if k == 0:
            return "1.0" if c == 0 else "0"
        return v(Y(k) + c)

    def wr(chunk):
        a("ds_write_b128 v2, %s offset:%d" % (v(ST + 4 * chunk, 4), 16 * chunk))

    emit_group(a, [cmul(X[1536], X[1280], PP)] + [cmul(Y(16 + k), Y(16), Y(k)) for k in range(1, 6)])
    for c in range(2):
        for hb in range(2):
            for o in pack([xv(8 * hb + i, c) for i in range(8)], ST + 4 * (3 * c + hb)):
                a(o)
            wr(3 * c + hb)
    emit_group(a, [cmul(X[1792], X[1536], PP)] + [cmul(Y(16 + k), Y(16), Y(k)) for k in range(6, 11)])
    for c in range(2):
        for hb in range(2):
            for o in pack([yv(8 * hb + i, c) for i in range(8)], ST + 4 * (6 + 4 * c + hb)):
                a(o)
            wr(6 + 4 * c + hb)
    emit_group(a, [cmul(X[2048], X[1792], PP)] + [cmul(Y(16 + k), Y(16), Y(k)) for k in range(11, 16)])
    for c in range(2):
        for o in pack([yv(16 + i, c) for i in range(8)], ST + 4 * (6 + 4 * c + 2)):
            a(o)
        wr(6 + 4 * c + 2)
    for c in range(2):
        for o in pack([xv(16 + i, c) for i in range(8)], ST + 4 * (3 * c + 2)):
            a(o)
        wr(3 * c + 2)
    for c in range(2):
        for o in pack([yv(24 + i, c) for i in range(8)], ST + 4 * (6 + 4 * c + 3)):
            a(o)
        wr(6 + 4 * c + 3)

    FR = 64

    def trd(i):
        B_, sub = divmod(i, 2)
        base = 240 * (16 * B_ + 2 * sub)
        for q, o in enumerate((0, 48, 96, 160)):
            a("ds_read_b64_tr_b16 %s, v3 offset:%d" % (v(FR + 8 * i + 2 * q, 2), base + o))

    for i in range(3):
        trd(i)
    for i in range(12):
        a("v_mov_b32 %s, %s" % (v(SEED + i), v(SEED + 6 + i)))
    emit_group(a, [cmul(Q2, Q1, Q1)])
    emit_group(a, [cmul(Q4, Q2, Q2)])
    for i in range(8):
        a("s_waitcnt lgkmcnt(%d)" % (4 * min(2, 7 - i)))
        a("v_mfma_f32_32x32x16_bf16 %s, %s, %s, %s" % (v(D, 16), v(FR + 8 * i, 4), v(FR + 8 * i + 4, 4), v(D, 16)))
        if i + 3 < 8:
            trd(i + 3)
    a("s_sub_u32 s80, s80, 1")
    a("s_cmp_lg_u32 s80, 0")
    a("s_cbranch_scc1 %s" % L)
    G.stamp(a, 2, cfg)
    a("s_mov_b32 s6, 0x05040100")
    a("s_mov_b32 s7, 0x07060302")
    a("v_lshlrev_b32 v4, 3, v0")
    a("v_sub_u32 v4, 4088, v4")
    a("v_add_u32 v5, %d, v4" % (4 * REG))
    a("s_waitcnt vmcnt(0)")
    for c in range(8):
        sel = "s7" if c & 1 else "s6"
        q = c >> 1
        a("v_perm_b32 %s, %s, %s, %s" % (v(128 + 2 * c), v(24 + 8 + q), v(24 + 12 + q), sel))
        a("v_perm_b32 %s, %s, %s, %s" % (v(129 + 2 * c), v(24 + q), v(24 + 4 + q), sel))
        a("ds_write_b64 %s, %s offset:%d" % (v(4 + (c >> 2)), v(128 + 2 * c, 2), (c & 3) * REG))
    a("v_and_b32 v4, 31, v1")
    a("v_lshlrev_b32 v4, 4, v4")
    a("v_lshrrev_b32 v5, 5, v1")
    a("v_lshl_add_u32 v4, v5, 3, v4")
    a("v_add_u32 v4, s11, v4")
    a("v_lshl_add_u32 v5, v1, 4, s11")
    a("v_and_b32 v8, 7, v1")
    a("v_lshl_add_u32 v8, v8, 2, s11")
    a("v_lshlrev_b32 v21, 16, v21")
    a("v_cmp_eq_u32 vcc, 0, v1")
    a("v_cndmask_b32 v21, 0, v21, vcc")
    a("v_and_b32 v9, 1, v1")
    a("v_cmp_eq_u32 vcc, 1, v9")
    a("ds_write_b32 v8, v6")
    a("ds_write_b32 v8, v6 offset:%d" % OOFF)
    a("v_add_f32 %s, %s, v21" % (v(D), v(D)))
    R = 64
    a("v_mov_b32_dpp v10, %s wave_rol:1 row_mask:0xf bank_mask:0xf" % v(D + 9))
    a("v_mov_b32_dpp v11, %s wave_rol:1 row_mask:0xf bank_mask:0xf" % v(D + 10))
    a("v_mov_b32_dpp v12, %s wave_rol:1 row_mask:0xf bank_mask:0xf" % v(D + 11))
    a("v_cvt_pk_bf16_f32 %s, %s, %s" % (v(R), v(D), v(D + 1)))
    a("v_cvt_pk_bf16_f32 %s, %s, %s" % (v(R + 1), v(D + 2), v(D + 3)))
    a("v_mov_b32_dpp v10, %s wave_shl:1 row_mask:0xf bank_mask:0xf" % v(D + 7))
    a("v_mov_b32_dpp v11, %s wave_shl:1 row_mask:0xf bank_mask:0xf" % v(D + 9))
    a("v_mov_b32_dpp v12, %s wave_shl:1 row_mask:0xf bank_mask:0xf" % v(D + 10))
    a("ds_write_b64 v4, %s offset:32" % v(R, 2))
    a("v_cvt_pk_bf16_f32 %s, %s, %s" % (v(R + 2), v(D + 4), v(D + 4)))
    a("v_cvt_pk_bf16_f32 %s, %s, %s" % (v(R + 3), v(D + 5), v(D + 6)))
    a("ds_write_b64 v4, %s offset:%d" % (v(R + 2, 2), 32 + 512))
    a("v_cvt_pk_bf16_f32 %s, %s, %s" % (v(R + 4), v(D + 7), v(D + 7)))
    a("v_cvt_pk_bf16_f32 %s, %s, %s" % (v(R + 5), v(D + 7), v(D + 8)))
    a("v_cvt_pk_bf16_f32 %s, %s, %s" % (v(R + 6), v(D + 8), v(D + 8)))
    a("v_cvt_pk_bf16_f32 %s, v10, v10" % v(R + 7))
    a("ds_write_b128 v5, %s offset:%d" % (v(R + 4, 4), 32 + 1024))
    for k, (x, n) in enumerate(((D + 9, 11), (D + 10, 12))):
        o = R + 8 + 4 * k
        a("v_cndmask_b32 v13, %s, %s, vcc" % (v(x), v(n)))
        a("v_cvt_pk_bf16_f32 %s, %s, %s" % (v(o), v(x), v(x)))
        a("v_cvt_pk_bf16_f32 %s, %s, %s" % (v(o + 1), v(x), v(x)))
        a("v_cvt_pk_bf16_f32 %s, v13, %s" % (v(o + 2), v(n)))
        a("v_cvt_pk_bf16_f32 %s, %s, %s" % (v(o + 3), v(n), v(n)))
        a("ds_write_b128 v5, %s offset:%d" % (v(o, 4), 32 + 2048 + 1024 * k))
    for i in range(4):
        a("ds_read_b128 %s, v5 offset:%d" % (v(96 + 4 * i, 4), 32 + 1024 * i))
        a("ds_read_b32 %s, v5 offset:%d" % (v(112 + i), 28 + 1024 * i))
    a("v_and_b32 v8, 15, v1")
    a("v_add_u32 v9, 10, v8")
    a("v_lshrrev_b32 v9, 1, v9")
    a("v_lshrrev_b32 v10, 5, v1")
    a("v_bfe_u32 v11, v1, 4, 1")
    a("v_lshlrev_b32 v10, 1, v10")
    a("v_sub_u32 v10, v10, v11")
    a("v_lshl_add_u32 v9, v10, 2, v9")
    a("v_and_b32 v11, 1, v1")
    a("v_xor_b32 v11, 1, v11")
    a("s_movk_i32 s6, 1040")
    a("v_mad_u32_u24 v9, v11, s6, v9")
    a("v_lshl_add_u32 v14, v9, 2, s11")
    for q in range(1, 4):
        a("v_add_u32 %s, %d, v14" % (v(14 + q), 1024 * q))
    a("v_lshlrev_b32 v10, 4, v10")
    a("v_lshlrev_b32 v8, 5, v8")
    a("v_sub_u32 v10, v10, v8")
    a("s_add_u32 s6, s10, 496")
    a("v_add_u32 v18, s6, v10")
    for i in range(4):
        a("s_waitcnt lgkmcnt(%d)" % (6 - 2 * i + i))
        e = 96 + 4 * i
        o = 116 + 4 * i
        a("v_alignbit_b32 %s, %s, %s, 16" % (v(o), v(e), v(112 + i)))
        for q in range(1, 4):
            a("v_alignbit_b32 %s, %s, %s, 16" % (v(o + q), v(e + q), v(e + q - 1)))
        a("ds_write_b128 v5, %s offset:%d" % (v(o, 4), OOFF + 32 + 1024 * i))
    AB = (64, 128)
    BB = (96, 160)
    DT = 192

    def rdA(b):
        out = []
        for c in range(8):
            o = 128 * (c & 1) + 16 * b
            for h in range(2):
                out.append("ds_read2_b32 %s, %s offset0:%d offset1:%d" % (
                    v(AB[b & 1] + 4 * c + 2 * h, 2), v(14 + (c >> 1)), o + 2 * h, o + 2 * h + 1))
        return out

    def rdB(b):
        return ["ds_read_b128 %s, v18 offset:%d" % (v(BB[b & 1] + 4 * q, 4), 512 * (7 - q) + 64 * b) for q in range(8)]

    for r_ in rdA(0):
        a(r_)
    a("s_waitcnt lgkmcnt(0)")
    a("s_barrier")
    G.stamp(a, 3, cfg)
    for r_ in rdB(0):
        a(r_)
    for b in range(8):
        rs = []
        if b < 7:
            ra, rb = rdA(b + 1), rdB(b + 1)
            rs = ra[:2] + rb + ra[2:]
        first = True
        n = 0
        for c in range(8):
            for q in range(8 - c):
                if b == 0 and c == 0:
                    a("s_waitcnt lgkmcnt(%d)" % min(15, 7 - q + min(n, 24)))
                elif first:
                    a("s_waitcnt lgkmcnt(0)")
                first = False
                d = DT + 4 * (q + c)
                a("v_mfma_f32_16x16x32_bf16 %s, %s, %s, %s" % (
                    v(d, 4), v(AB[b & 1] + 4 * c, 4), v(BB[b & 1] + 4 * q, 4), "0" if (b == 0 and c == 0) else v(d, 4)))
                if rs:
                    a(rs.pop(0))
                    n += 1
        assert not rs
        if b == 6 and fused:
            a("buffer_load_dword v20, v6, %s, 0 offen sc1" % s(G.R_D, 4))
    G.stamp(a, 4, cfg)
    a("v_and_b32 v8, 15, v1")
    a("v_lshlrev_b32 v8, 5, v8")
    a("v_lshrrev_b32 v9, 4, v1")
    a("v_lshl_add_u32 v8, v9, 3, v8")
    a("v_add_u32 v8, s11, v8")
    a("v_lshlrev_b32 v9, 2, v0")
    a("v_add_u32 v9, %d, v9" % KOFF)
    a("v_add_u32 v10, %d, v9" % (4 * REG))
    a("v_lshlrev_b32 v11, 4, v0")
    a("s_lshl_b32 s6, s8, 15")
    a("v_add_u32 v11, s6, v11")
    for t in range(8):
        a("v_cvt_pk_bf16_f32 %s, %s, %s" % (v(64 + 2 * t), v(DT + 4 * t), v(DT + 4 * t + 1)))
        a("v_cvt_pk_bf16_f32 %s, %s, %s" % (v(65 + 2 * t), v(DT + 4 * t + 2), v(DT + 4 * t + 3)))
        a("ds_write_b64 v8, %s offset:%d" % (v(64 + 2 * t, 2), 512 * t))
    a("s_mov_b32 s6, 0x05040100")
    a("s_mov_b32 s7, 0x07060302")
    a("s_waitcnt lgkmcnt(0)")
    a("s_barrier")
    for p in range(2):
        for c in range(8):
            a("ds_read_b32 %s, %s offset:%d" % (v(96 + 8 * p + c), v(9 + (c >> 2)), (c & 3) * REG + 2048 * p))
    for p in range(2):
        for g in range(2):
            a("s_waitcnt lgkmcnt(%d)" % (12 - 8 * p - 4 * g))
            e = 96 + 8 * p + 4 * g
            o = 128 + 8 * p + 4 * g
            a("v_perm_b32 %s, %s, %s, s6" % (v(o), v(e + 1), v(e)))
            a("v_perm_b32 %s, %s, %s, s6" % (v(o + 1), v(e + 3), v(e + 2)))
            a("v_perm_b32 %s, %s, %s, s7" % (v(o + 2), v(e + 1), v(e)))
            a("v_perm_b32 %s, %s, %s, s7" % (v(o + 3), v(e + 3), v(e + 2)))
            a("s_mov_b32 s12, %d" % (16384 * g + 8192 * p))
            a("buffer_store_dwordx4 %s, v11, %s, s12 offen%s" % (v(o, 4), s(G.R_A, 4), sc))
    if fused:
        LE = a.newlabel("CVE")
        a("s_waitcnt vmcnt(0)")
        a("s_barrier")
        a("s_cmp_lg_u32 %s, 0" % s(S_W))
        a("s_cbranch_scc1 %s" % LE)
        G.wait_ready(a, 20, 6, issued=True)
        a("s_add_u32 s6, s8, %d" % G.F_CV)
        G.flag_store(a, 8, 9, 6)
        a.label(LE)
    G.stamp(a, 7, cfg)
```

```python
import sys
from asmlib import *

BASE = "gated_mix__ssm_conv_s4__dense_activation_relu__prompt"
NAME = BASE + "_kernel"

H_SZ = 128 * 48 * 1024
A_OFF = 0x600000
A_SZ = 160 * 16384
G_OFF = 0x880000
FLAG = 0x4000
NFLAG = 272
G_SZ = FLAG + 320 * 128
F_G1 = 0
F_CV = 176
F_GT = 256
X_SZ = 2048 * 1280
W_SZ = 640 * 3072
STG = 36864

P_U, P_ARE, P_AIM, P_BRE, P_BIM, P_CRE, P_CIM, P_LDT = 16, 18, 20, 22, 24, 26, 28, 30
P_DSK, P_BX, P_W1, P_W2, P_GW, P_OUT, P_DBG, P_WS = 32, 34, 36, 38, 40, 42, 44, 46
R_X, R_W1, R_W2, R_H, R_A, R_G, R_O, R_D = 48, 52, 56, 60, 64, 68, 72, 76
S_W, S_X, S_J = 3, 4, 5


class VM:
    def __init__(self, a):
        self.a = a
        self.q = []

    def issue(self, text, tag=None):
        self.a(text)
        self.q.append(tag)

    def wait(self, tag, extra=""):
        idx = max(i for i, t in enumerate(self.q) if t == tag)
        n = len(self.q) - 1 - idx
        assert n <= 63
        self.a("s_waitcnt vmcnt(%d) %s" % (n, extra))

    def waitall(self, extra=""):
        self.a("s_waitcnt vmcnt(0) %s" % extra)


def srd(a, r, p, size, off=0):
    if off:
        a("s_add_u32 %s, %s, 0x%x" % (s(r), s(p), off))
        a("s_addc_u32 %s, %s, 0" % (s(r + 1), s(p + 1)))
    else:
        a("s_mov_b32 %s, %s" % (s(r), s(p)))
        a("s_mov_b32 %s, %s" % (s(r + 1), s(p + 1)))
    a("s_mov_b32 %s, 0x%x" % (s(r + 2), size))
    a("s_mov_b32 %s, 0x20000" % s(r + 3))


def stamp(a, idx, cfg):
    if not cfg.get("stamps"):
        return
    a("s_memrealtime s[90:91]")
    a("s_waitcnt lgkmcnt(0)")
    a("v_mov_b32 v254, s90")
    a("s_lshl_b32 s96, s2, 3")
    a("s_add_u32 s96, s96, s3")
    a("s_lshl_b32 s96, s96, 6")
    a("s_add_u32 s96, s96, %d" % (idx * 4))
    a("v_mov_b32 v255, s96")
    a("buffer_store_dword v254, v255, s[92:95], 0 offen")


def prologue(a, cfg, end):
    a("s_load_dwordx16 s[16:31], s[0:1], 0")
    a("s_load_dwordx16 s[32:47], s[0:1], 64")
    a("s_cmpk_ge_u32 s2, 0x100")
    a("s_cbranch_scc1 %s" % end)
    a("v_lshrrev_b32 v1, 6, v0")
    a("s_and_b32 %s, s2, 7" % s(S_X))
    a("v_readfirstlane_b32 %s, v1" % s(S_W))
    a("s_lshr_b32 %s, s2, 3" % s(S_J))
    a("v_and_b32 v1, 63, v0")
    a("s_waitcnt lgkmcnt(0)")
    if cfg.get("stamps"):
        srd(a, 92, P_WS, 0x40000, 0x900000)
        stamp(a, 0, cfg)


def flag_store(a, vt, va, sidx):
    a("s_lshl_b32 s7, %s, 7" % s(sidx))
    a("s_add_u32 s7, s7, 0x%x" % FLAG)
    a("v_mov_b32 %s, s7" % v(va))
    a("v_mov_b32 %s, 1" % v(vt))
    a("s_mov_b64 exec, 1")
    a("buffer_store_dword %s, %s, %s, 0 offen sc1" % (v(vt), v(va), s(R_G, 4)))
    a("s_mov_b64 exec, -1")


def wait_ready(a, vt, vz, issued=False):
    L = a.newlabel("RDY")
    D = a.newlabel("RDYD")
    if issued:
        a("v_cmp_ne_u32 vcc, 0, %s" % v(vt))
        a("s_cbranch_vccnz %s" % D)
    a.label(L)
    a("buffer_load_dword %s, %s, %s, 0 offen sc1" % (v(vt), v(vz), s(R_D, 4)))
    a("s_waitcnt vmcnt(0)")
    a("v_cmp_ne_u32 vcc, 0, %s" % v(vt))
    a("s_cbranch_vccz %s" % L)
    a.label(D)


def poll_flags(a, vt, va, issued=False):
    L = a.newlabel("POLL")
    D = a.newlabel("POLLD")
    if issued:
        a("v_cmp_ne_u32 vcc, 1, %s" % v(vt))
        a("s_cbranch_vccz %s" % D)
    a.label(L)
    a("buffer_load_dword %s, %s, %s, 0 offen sc1" % (v(vt), v(va), s(R_G, 4)))
    a("s_waitcnt vmcnt(0)")
    a("v_cmp_ne_u32 vcc, 1, %s" % v(vt))
    a("s_cbranch_vccnz %s" % L)
    a.label(D)


S_RB, S_FS, S_R, S_DT = 8, 9, 10, 11


def ffn_ids(a):
    a("s_lshr_b32 s6, %s, 1" % s(S_X))
    a("s_mul_i32 s6, s6, 22")
    a("s_add_u32 s6, s6, %s" % s(S_J))
    a("s_lshr_b32 %s, s6, 2" % s(S_RB))
    a("s_and_b32 s6, s6, 3")
    a("s_and_b32 s7, %s, 1" % s(S_X))
    a("s_lshl_b32 s7, s7, 2")
    a("s_add_u32 %s, s6, s7" % s(S_FS))
    g2_ids(a)


def g2_ids(a):
    a("s_lshl_b32 %s, %s, 1" % (s(S_R), s(S_X)))
    a("s_cmp_ge_u32 %s, 10" % s(S_J))
    a("s_cselect_b32 s6, 1, 0")
    a("s_cselect_b32 s7, 10, 0")
    a("s_sub_u32 %s, %s, s7" % (s(S_DT), s(S_J)))
    a("s_cmp_eq_u32 %s, 20" % s(S_J))
    a("s_cselect_b32 s6, 0, s6")
    a("s_add_u32 %s, %s, s6" % (s(S_R), s(S_R)))


def w2_addr(a, vd, vt):
    a("v_lshrrev_b32 %s, 3, v1" % v(vd))
    a("v_bfe_u32 %s, v1, 4, 2" % v(vt))
    a("v_lshlrev_b32 %s, 1, %s" % (v(vt), v(vt)))
    a("s_movk_i32 s6, 1280")
    a("v_mul_u32_u24 %s, s6, %s" % (v(vd), v(vd)))
    a("v_xor_b32 %s, %s, v1" % (v(vt), v(vt)))
    a("v_and_b32 %s, 7, %s" % (v(vt), v(vt)))
    a("v_lshl_add_u32 %s, %s, 4, %s" % (v(vd), v(vt), v(vd)))
    a("s_lshl_b32 s6, %s, 7" % s(S_DT))
    a("v_add_u32 %s, s6, %s" % (v(vd), v(vd)))


def w2_pieces(a, vw, p0_sgpr, n, lds_sub=0):
    a("s_lshl_b32 s6, %s, 10" % s(p0_sgpr))
    if lds_sub:
        a("s_sub_u32 s6, s6, 0x%x" % lds_sub)
    a("s_mul_i32 s7, %s, 10240" % s(p0_sgpr))
    for i in range(n):
        a("s_mov_b32 m0, s6")
        a("buffer_load_dwordx4 %s, %s, s7 offen lds" % (v(vw), s(R_W2, 4)))
        if i + 1 < n:
            a("s_add_u32 s6, s6, 1024")
            a("s_add_u32 s7, s7, 10240")


def g1_loader(a, cfg, Lg2):
    fused = cfg["fused"]
    a("s_sub_u32 s12, %s, 4" % s(S_W))
    a("v_lshrrev_b32 v12, 3, v1")
    a("v_lshrrev_b32 v13, 4, v1")
    a("s_mul_i32 s6, %s, 96" % s(S_RB))
    a("s_mul_i32 s7, s12, 24")
    a("s_add_u32 s6, s6, s7")
    a("v_add_u32 v12, s6, v12")
    a("s_movk_i32 s6, 1280")
    a("v_mul_u32_u24 v12, s6, v12")
    a("s_and_b32 s7, s12, 1")
    a("s_lshl_b32 s7, s7, 2")
    a("v_xor_b32 v13, s7, v13")
    a("v_xor_b32 v13, v13, v1")
    a("v_and_b32 v13, 7, v13")
    a("v_lshl_add_u32 v2, v13, 4, v12")
    a("v_xor_b32 v3, 64, v2")
    a("v_add_u32 v3, %d, v3" % (8 * 1280 - 1024))
    a("v_add_u32 v4, %d, v2" % (16 * 1280 - 2048))
    a("s_mul_i32 s6, s12, %d" % (16 * 3072))
    a("s_mul_i32 s7, %s, 384" % s(S_FS))
    a("s_add_u32 s13, s6, s7")
    a("s_mov_b32 s14, 43691")
    a("s_movk_i32 s15, 3072")
    for j in range(6):
        d = 5 + j
        a("v_add_u32 v12, %d, v1" % (64 * j))
        a("v_mul_u32_u24 v13, s14, v12")
        a("v_lshrrev_b32 v13, 20, v13")
        a("v_mul_u32_u24 v14, 24, v13")
        a("v_sub_u32 v12, v12, v14")
        a("v_and_b32 v14, 2, v13")
        a("v_xor_b32 v12, v12, v14")
        a("v_lshrrev_b32 v14, 1, v13")
        a("v_and_b32 v14, 4, v14")
        a("v_xor_b32 v12, v12, v14")
        a("v_mul_u32_u24 v13, s15, v13")
        a("v_lshl_add_u32 v12, v12, 4, v13")
        a("s_sub_u32 s6, s13, %d" % (1024 * (j & 3)))
        a("v_add_u32 %s, s6, v12" % v(d))
    a("s_mul_i32 s13, s12, 3072")
    a("s_mov_b32 s14, 0")
    a("s_mov_b32 s15, 0")
    a("s_mul_i32 s81, s12, 3072")
    a("s_add_u32 s81, s81, 12288")

    def issue():
        a("s_mov_b32 m0, s13")
        a("s_add_u32 s6, s13, s81")
        for j in range(3):
            a("buffer_load_dwordx4 %s, %s, s14 offen offset:%d lds" % (v(2 + j), s(R_X, 4), 1024 * j))
        a("s_mov_b32 m0, s6")
        a("s_add_u32 s6, s6, 4096")
        for j in range(4):
            a("buffer_load_dwordx4 %s, %s, s15 offen offset:%d lds" % (v(5 + j), s(R_W1, 4), 1024 * j))
        a("s_mov_b32 m0, s6")
        a("s_add_u32 s14, s14, 128")
        for j in range(4, 6):
            a("buffer_load_dwordx4 %s, %s, s15 offen offset:%d lds" % (v(5 + j), s(R_W1, 4), 1024 * (j - 4)))
        a("s_add_u32 s15, s15, %d" % (64 * 3072))
        a("s_add_u32 s13, s13, %d" % STG)
        a("s_cmp_ge_u32 s13, %d" % (4 * STG))
        a("s_cselect_b32 s6, %d, 0" % (4 * STG))
        a("s_sub_u32 s13, s13, s6")

    LA = a.newlabel("G1LA")
    LB = a.newlabel("G1LB")
    a.label(LA)
    issue()
    a("s_cmp_lt_u32 s14, 512")
    a("s_cbranch_scc1 %s" % LA)
    if fused:
        w2_addr(a, 11, 12)
    a("s_waitcnt vmcnt(27)")
    a("s_barrier")
    a.label(LB)
    a("s_waitcnt vmcnt(18)")
    a("s_barrier")
    issue()
    a("s_cmp_lt_u32 s14, 1280")
    a("s_cbranch_scc1 %s" % LB)
    if not fused:
        a("s_waitcnt vmcnt(18)")
        a("s_barrier")
        a("s_waitcnt vmcnt(9)")
        a("s_barrier")
        a("s_waitcnt vmcnt(0)")
        a("s_barrier")
        a("s_barrier")
        a("s_branch %s" % Lg2)
        return
    LN = a.newlabel("G1LN")
    a("s_cmp_ge_u32 %s, 20" % s(S_J))
    a("s_cbranch_scc1 %s" % LN)
    a("s_lshl_b32 s80, s12, 2")
    a("s_add_u32 s80, s80, 144")
    w2_pieces(a, 11, 80, 4)
    for base in (72, 108, 0):
        a("s_waitcnt vmcnt(22)")
        a("s_barrier")
        a("s_mul_i32 s80, s12, 9")
        if base:
            a("s_add_u32 s80, s80, %d" % base)
        w2_pieces(a, 11, 80, 9)
    a("s_barrier")
    a("s_mul_i32 s80, s12, 9")
    a("s_add_u32 s80, s80, 36")
    w2_pieces(a, 11, 80, 9)
    a("s_barrier")
    a("s_waitcnt vmcnt(0)")
    a("s_branch %s" % Lg2)
    a.label(LN)
    a("s_waitcnt vmcnt(18)")
    a("s_barrier")
    a("s_waitcnt vmcnt(9)")
    a("s_barrier")
    a("s_waitcnt vmcnt(0)")
    a("s_barrier")
    a("s_barrier")
    a("s_barrier")
    a("s_branch %s" % Lg2)


def g1_compute(a, cfg):
    fused = cfg["fused"]
    ACC, A0, A1, B0, B1 = 128, 64, 88, 32, 44
    if fused:
        LS = a.newlabel("G1NR")
        a("s_or_b32 s6, s2, %s" % s(S_W))
        a("s_cmp_lg_u32 s6, 0")
        a("s_cbranch_scc1 %s" % LS)
        a("v_lshlrev_b32 v2, 7, v1")
        a("v_add_u32 v2, 0x%x, v2" % FLAG)
        a("v_mov_b32 v3, 0")
        for i in range(5):
            a("s_mov_b32 s6, %d" % (i * 8192))
            a("buffer_store_dword v3, v2, %s, s6 offen sc1" % s(R_G, 4))
        a("v_mov_b32 v2, 1")
        a("s_waitcnt vmcnt(0)")
        a("buffer_store_dword v2, v3, %s, 0 offen sc1" % s(R_D, 4))
        a.label(LS)
    a("s_and_b32 s12, %s, 1" % s(S_W))
    a("s_lshr_b32 s13, %s, 1" % s(S_W))
    a("v_lshrrev_b32 v6, 4, v1")
    a("v_bfe_u32 v7, v1, 2, 2")
    a("v_lshl_add_u32 v8, v6, 3, v7")
    a("s_movk_i32 s6, 384")
    a("v_mul_u32_u24 v8, s6, v8")
    a("v_lshrrev_b32 v9, 1, v7")
    a("v_and_b32 v10, 1, v6")
    a("v_lshl_or_b32 v9, v10, 1, v9")
    a("s_lshl_b32 s6, s12, 1")
    a("v_xor_b32 v9, s6, v9")
    a("v_lshl_add_u32 v8, v9, 5, v8")
    a("v_and_b32 v9, 3, v1")
    a("v_lshl_add_u32 v8, v9, 3, v8")
    a("v_add_u32 v2, 12288, v8")
    a("v_xor_b32 v3, 32, v2")
    a("v_and_b32 v8, 15, v1")
    a("v_lshrrev_b32 v9, 1, v8")
    a("v_xor_b32 v9, v9, v6")
    a("v_lshlrev_b32 v9, 4, v9")
    a("v_lshl_add_u32 v9, v8, 7, v9")
    a("s_mul_i32 s6, s13, %d" % (48 * 128))
    a("v_add_u32 v4, s6, v9")
    a("v_xor_b32 v5, 64, v4")
    a("s_mul_i32 s6, %s, 288" % s(S_RB))
    a("s_mul_i32 s7, %s, 6" % s(S_FS))
    a("s_add_u32 s6, s6, s7")
    a("s_mul_i32 s7, s13, 144")
    a("s_add_u32 s6, s6, s7")
    a("s_add_u32 s6, s6, s12")
    a("s_lshl_b32 s6, s6, 10")
    a("v_lshlrev_b32 v6, 4, v1")
    a("v_add_u32 v6, s6, v6")
    a("s_mov_b32 s14, 0")
    a("s_mov_b32 s82, %d" % STG)
    a("s_mov_b32 s15, 9")

    def reads(ks, A, B):
        out = []
        for lam in range(3):
            out.append("ds_read_b128 %s, %s offset:%d" % (v(B + 4 * lam, 4), v(4 + ks), 2048 * lam))
        for t in range(3):
            for e in range(2):
                for h in range(2):
                    out.append("ds_read_b64_tr_b16 %s, %s offset:%d" % (
                        v(A + (t * 2 + e) * 4 + 2 * h, 2), v(2 + e), ks * 12288 + h * 1536 + t * 128))
        return out

    def mfmas(A, B, first=False):
        out = []
        for t in range(3):
            for lam in range(3):
                for e in range(2):
                    d = ACC + ((t * 3 + lam) * 2 + e) * 4
                    out.append("v_mfma_f32_16x16x32_bf16 %s, %s, %s, %s" % (
                        v(d, 4), v(A + (t * 2 + e) * 4, 4), v(B + 4 * lam, 4), "0" if first else v(d, 4)))
        return out

    def mix(ms, rs, tail=()):
        rs = list(rs)
        tail = list(tail)
        for i, m in enumerate(ms):
            a(m)
            for _ in range(2):
                if rs:
                    a(rs.pop(0))
            if not rs and tail and i >= 9:
                a(tail.pop(0))
        assert not rs and not tail

    def bump():
        return ["s_add_u32 s14, s14, %d" % STG,
                "s_cmp_ge_u32 s14, %d" % (4 * STG),
                "s_cselect_b32 s6, %d, s82" % (-3 * STG & 0xffffffff),
                "s_cselect_b32 s14, 0, s14"] + ["v_add_u32 v%d, s6, v%d" % (i, i) for i in range(2, 6)]

    a("s_barrier")
    for r_ in reads(0, A0, B0):
        a(r_)
    a("s_waitcnt lgkmcnt(0)")
    mix(mfmas(A0, B0, True), reads(1, A1, B1), bump())
    L = a.newlabel("G1C")
    a.label(L)
    a("s_waitcnt lgkmcnt(0)")
    a("s_barrier")
    mix(mfmas(A1, B1), reads(0, A0, B0))
    a("s_waitcnt lgkmcnt(0)")
    mix(mfmas(A0, B0), reads(1, A1, B1), bump())
    a("s_sub_u32 s15, s15, 1")
    a("s_cmp_lg_u32 s15, 0")
    a("s_cbranch_scc1 %s" % L)
    a("s_waitcnt lgkmcnt(0)")
    a("s_barrier")
    if fused:
        a("v_mov_b32 v7, 0")
        a("buffer_load_dword v8, v7, %s, 0 offen sc1" % s(R_D, 4))
    ms = mfmas(A1, B1)
    sc = " sc1" if fused else ""
    pend = []
    for i in range(9):
        a(ms[2 * i])
        a(ms[2 * i + 1])
        pend.append(i)
        if len(pend) > 3 or i == 8:
            while pend and (len(pend) > 3 or i == 8):
                k = pend.pop(0)
                t, lam = divmod(k, 3)
                d = ACC + k * 8
                o = (B0 if k % 2 == 0 else A0) + 4 * (k // 2 % 3)
                for q in range(4):
                    a("v_cvt_pk_bf16_f32 %s, %s, %s" % (v(o + q), v(d + 2 * q), v(d + 2 * q + 1)))
                for q in range(4):
                    a("v_pk_max_i16 %s, %s, 0" % (v(o + q), v(o + q)))
                a("s_mov_b32 s6, %d" % (lam * 49152 + t * 2048))
                a("buffer_store_dwordx4 %s, v6, %s, s6 offen%s" % (v(o, 4), s(R_H, 4), sc))
    if fused:
        a("s_waitcnt vmcnt(0)")
        a("s_barrier")


def g1_publish(a, cfg, Lafter):
    a("s_cmp_lg_u32 %s, 0" % s(S_W))
    a("s_cbranch_scc1 %s" % Lafter)
    wait_ready(a, 8, 7, issued=True)
    a("s_lshl_b32 s6, %s, 3" % s(S_RB))
    a("s_add_u32 s6, s6, %s" % s(S_FS))
    flag_store(a, 8, 9, 6)
    a("s_cmp_ge_u32 %s, 20" % s(S_J))
    a("s_cbranch_scc1 %s" % Lafter)
    a("s_lshl_b32 s6, %s, 2" % s(S_R))
    a("s_mul_i32 s6, s6, 43691")
    a("s_lshr_b32 s6, s6, 17")
    a("s_lshl_b32 s6, s6, 10")
    a("s_add_u32 s6, s6, 0x%x" % FLAG)
    a("v_and_b32 v9, 15, v1")
    a("v_lshlrev_b32 v9, 7, v9")
    a("v_add_u32 v9, s6, v9")
    poll_flags(a, 8, 9)


def gate(a, cfg):
    fused = cfg["fused"]
    srd(a, R_W1, P_GW, 1280)
    a("v_and_b32 v2, 15, v1")
    a("v_lshlrev_b32 v2, 4, v2")
    a("v_lshrrev_b32 v3, 4, v1")
    a("s_lshl_b32 s6, %s, 7" % s(S_R))
    a("s_lshl_b32 s7, %s, 4" % s(S_W))
    a("s_add_u32 s12, s6, s7")
    a("v_add_u32 v4, s12, v3")
    a("s_movk_i32 s6, 1280")
    a("v_mul_u32_u24 v4, s6, v4")
    a("v_add_u32 v4, v4, v2")
    for m in range(5):
        a("buffer_load_dwordx4 %s, v2, %s, 0 offen offset:%d" % (v(16 + 4 * m, 4), s(R_W1, 4), 256 * m))
    for q in range(4):
        a("s_mov_b32 s6, %d" % (5120 * q))
        for m in range(5):
            a("buffer_load_dwordx4 %s, v4, %s, s6 offen offset:%d" % (v(40 + 20 * q + 4 * m, 4), s(R_X, 4), 256 * m))
    for q in range(4):
        a("v_mov_b32 %s, 0" % v(8 + q))
    for q in range(4):
        a("s_waitcnt vmcnt(%d)" % (15 - 5 * q))
        for i in range(20):
            a("v_dot2_f32_bf16 %s, %s, %s, %s" % (v(8 + q), v(40 + 20 * q + i), v(16 + i), v(8 + q)))
    for sh in (8, 4, 2, 1):
        for q in range(4):
            a("v_add_f32_dpp %s, %s, %s row_ror:%d row_mask:0xf bank_mask:0xf" % (v(8 + q), v(8 + q), v(8 + q), sh))
    a("v_and_b32 v5, 3, v1")
    for q in range(1, 4):
        a("v_cmp_eq_u32 vcc, %d, v5" % q)
        a("v_cndmask_b32 v8, v8, %s, vcc" % v(8 + q))
    a("v_cvt_pk_bf16_f32 v8, v8, v8")
    a("v_lshlrev_b32 v8, 16, v8")
    a("v_mul_f32 v8, 0xbfb8aa3b, v8")
    a("v_exp_f32 v8, v8")
    a("v_add_f32 v8, 1.0, v8")
    a("v_rcp_f32 v8, v8")
    a("v_cvt_pk_bf16_f32 v8, v8, v8")
    a("v_lshlrev_b32 v8, 16, v8")
    a("v_sub_f32 v9, 1.0, v8")
    a("v_cvt_pk_bf16_f32 v8, v8, v9")
    a("v_lshl_add_u32 v5, v5, 2, v3")
    a("v_add_u32 v5, s12, v5")
    a("v_lshlrev_b32 v5, 2, v5")
    a("buffer_store_dword v8, v5, %s, 0 offen%s" % (s(R_G, 4), " sc1" if fused else ""))
    if fused:
        LE = a.newlabel("GTE")
        a("s_waitcnt vmcnt(0)")
        a("s_barrier")
        a("s_cmp_lg_u32 %s, 0" % s(S_W))
        a("s_cbranch_scc1 %s" % LE)
        a("s_add_u32 s6, %s, %d" % (s(S_R), F_GT))
        flag_store(a, 8, 9, 6)
        a.label(LE)
    a("s_endpgm")


def g2(a, cfg):
    fused = cfg["fused"]
    D = cfg.get("g2_depth", 12)
    ACC, AB, HR = 224, (192, 208), 96
    sc = " sc1" if fused else ""
    vm = VM(a)
    a("s_lshr_b32 s12, %s, 2" % s(S_W))
    a("s_and_b32 s13, %s, 3" % s(S_W))
    a("s_lshl_b32 s6, %s, 3" % s(S_R))
    a("s_lshl_b32 s7, s13, 1")
    a("s_add_u32 s14, s6, s7")
    a("s_mul_i32 s6, s14, 48")
    a("s_add_u32 s6, s6, s12")
    a("s_lshl_b32 s6, s6, 10")
    a("v_lshlrev_b32 v6, 4, v1")
    a("v_add_u32 v6, s6, v6")
    a("v_add_u32 v7, 49152, v6")
    w2_addr(a, 8, 9)
    if not fused:
        a("s_mul_i32 s80, %s, 20" % s(S_W))
        w2_pieces(a, 8, 80, 20)
    else:
        a("s_barrier")

    def hload(n):
        for lam in range(2):
            a_ = "buffer_load_dwordx4 %s, %s, %s, s15 offen offset:%d%s" % (
                v(HR + (n % D) * 8 + 4 * lam, 4), v(6 + lam), s(R_H, 4), 2048 * (n & 1), sc)
            vm.issue(a_, ("h", n))

    def hsoff(n):
        if n % 2 == 0:
            a("s_mov_b32 s15, %d" % (2048 * n))

    for n in range(D):
        hsoff(n)
        hload(n)
    a("v_lshrrev_b32 v9, 2, v1")
    a("v_bfe_u32 v10, v1, 3, 2")
    a("v_lshlrev_b32 v9, 7, v9")
    a("v_lshl_or_b32 v9, v10, 5, v9")
    a("v_and_b32 v10, 3, v1")
    a("v_lshl_or_b32 v9, v10, 3, v9")
    a("s_lshl_b32 s6, s12, 12")
    a("v_add_u32 v2, s6, v9")
    for T in range(1, 4):
        a("v_xor_b32 %s, %d, v2" % (v(2 + T), 32 * T))
    a("s_add_u32 s14, s14, s12")
    a("s_lshl_b32 s14, s14, 4")
    a("v_and_b32 v11, 15, v1")
    a("v_add_u32 v11, s14, v11")
    a("v_lshrrev_b32 v12, 4, v1")
    a("s_lshl_b32 s6, %s, 4" % s(S_DT))
    a("v_add_u32 v12, s6, v12")
    a("v_lshlrev_b32 v12, 14, v12")
    a("v_lshl_add_u32 v10, v11, 3, v12")
    a("v_lshlrev_b32 v11, 2, v11")
    if fused:
        a("s_lshl_b32 s6, %s, 3" % s(S_DT))
        a("s_add_u32 s6, s6, %d" % F_CV)
        a("v_add_u32 v12, s6, v1")
        a("s_add_u32 s7, %s, %d" % (s(S_R), F_GT))
        a("v_mov_b32 v13, s7")
        a("v_cmp_gt_u32 vcc, 8, v1")
        a("v_cndmask_b32 v12, v13, v12, vcc")
        a("v_lshlrev_b32 v12, 7, v12")
        a("v_add_u32 v12, 0x%x, v12" % FLAG)
    if not fused:
        a("s_waitcnt vmcnt(%d)" % (2 * D))
        a("s_barrier")

    def reads(n):
        out = []
        base = (n % 8) * 8192 if n < 20 else (n - 20) * 8192
        for T in range(4):
            for h in range(2):
                out.append("ds_read_b64_tr_b16 %s, %s offset:%d" % (
                    v(AB[n & 1] + 4 * T + 2 * h, 2), v(2 + T), base + 2048 * h))
        return out

    def abump(n):
        if n in (8, 16):
            for T in range(4):
                a("v_add_u32 %s, 0x10000, %s" % (v(2 + T), v(2 + T)))
        if n == 20:
            for T in range(4):
                a("v_add_u32 %s, 0x%x, %s" % (v(2 + T), (-0x20000) & 0xffffffff, v(2 + T)))

    PSTEP = cfg.get("g2_poll", 19)
    for r_ in reads(0):
        a(r_)
    for n in range(24):
        vm.wait(("h", n), "lgkmcnt(0)")
        if n == 4:
            a("s_barrier")
            a("s_lshl_b32 s80, %s, 2" % s(S_W))
            a("s_add_u32 s80, s80, 160")
            w2_pieces(a, 8, 80, 4, 160 * 1024)
            for _ in range(4):
                vm.q.append(("w", 0))
        if n == 18:
            vm.wait(("w", 0))
            a("s_barrier")
        if n == PSTEP:
            if fused:
                vm.wait(("f", 0))
                poll_flags(a, 13, 12, issued=True)
            for T in range(4):
                a("s_mov_b32 s6, %d" % (65536 * T))
                vm.issue("buffer_load_dwordx2 %s, v10, %s, s6 offen%s" % (v(16 + 2 * T, 2), s(R_A, 4), sc), ("a", 0))
            vm.issue("buffer_load_dword v24, v11, %s, 0 offen%s" % (s(R_G, 4), sc), ("a", 0))
        rs = []
        if n + 1 < 24:
            abump(n + 1)
            rs = reads(n + 1)
        ms = []
        for lam in range(2):
            for T in range(4):
                d = ACC + (lam * 4 + T) * 4
                ms.append("v_mfma_f32_16x16x32_bf16 %s, %s, %s, %s" % (
                    v(d, 4), v(AB[n & 1] + 4 * T, 4), v(HR + (n % D) * 8 + 4 * lam, 4), "0" if n == 0 else v(d, 4)))
        for i, m in enumerate(ms):
            a(m)
            for _ in range(2):
                if rs:
                    a(rs.pop(0))
        if n + D < 24:
            hsoff(n + D)
            hload(n + D)
            if fused and n + D == 23:
                vm.issue("buffer_load_dword v13, v12, %s, 0 offen sc1" % s(R_G, 4), ("f", 0))
    a("v_lshlrev_b32 v2, 4, v1")
    a("s_lshl_b32 s6, %s, 12" % s(S_W))
    a("s_add_u32 s6, s6, 0x10000")
    a("v_add_u32 v3, s6, v2")
    a("s_xor_b32 s6, s6, 0x4000")
    a("v_add_u32 v4, s6, v2")
    LK = a.newlabel("G2K")
    LJ = a.newlabel("G2J")
    a("s_cmp_eq_u32 s12, 0")
    a("s_cbranch_scc1 %s" % LK)
    for T in range(4):
        a("ds_write_b128 v3, %s offset:%d" % (v(ACC + 4 * T, 4), 1024 * T))
    for i in range(16):
        a("v_mov_b32 %s, %s" % (v(ACC + i), v(ACC + 16 + i)))
    a("s_branch %s" % LJ)
    a.label(LK)
    for T in range(4):
        a("ds_write_b128 v3, %s offset:%d" % (v(ACC + 16 + 4 * T, 4), 1024 * T))
    a.label(LJ)
    vm.waitall()
    a("v_lshlrev_b32 v25, 16, v24")
    a("v_and_b32 v24, 0xffff0000, v24")
    for i in range(8):
        a("v_lshlrev_b32 %s, 16, %s" % (v(32 + 2 * i), v(16 + i)))
        a("v_and_b32 %s, 0xffff0000, %s" % (v(33 + 2 * i), v(16 + i)))
    for i in range(16):
        a("v_mul_f32 %s, v25, %s" % (v(32 + i), v(32 + i)))
    a("v_and_b32 v5, 15, v1")
    a("v_lshrrev_b32 v6, 5, v1")
    a("v_and_b32 v7, 7, v1")
    a("v_xor_b32 v6, v6, v7")
    a("v_lshlrev_b32 v6, 4, v6")
    a("v_lshl_add_u32 v6, v5, 7, v6")
    a("v_bfe_u32 v7, v1, 4, 1")
    a("v_lshl_add_u32 v6, v7, 3, v6")
    a("s_lshl_b32 s6, %s, 11" % s(S_W))
    a("s_add_u32 s6, s6, 0x18000")
    a("v_add_u32 v6, s6, v6")
    a("v_lshrrev_b32 v7, 3, v1")
    a("v_xor_b32 v8, v7, v1")
    a("v_and_b32 v8, 7, v8")
    a("v_lshlrev_b32 v8, 4, v8")
    a("v_lshl_add_u32 v8, v7, 7, v8")
    a("v_add_u32 v8, s6, v8")
    a("v_add_u32 v7, s14, v7")
    a("s_movk_i32 s6, 1280")
    a("v_mul_u32_u24 v7, s6, v7")
    a("v_and_b32 v9, 7, v1")
    a("v_lshl_add_u32 v7, v9, 4, v7")
    a("s_lshl_b32 s6, %s, 7" % s(S_DT))
    a("v_add_u32 v7, s6, v7")
    a("s_waitcnt lgkmcnt(0)")
    a("s_barrier")
    for T in range(4):
        a("ds_read_b128 %s, v4 offset:%d" % (v(64 + 4 * T, 4), 1024 * T))
    for T in range(4):
        a("s_waitcnt lgkmcnt(%d)" % (3 - T))
        for q in range(4):
            a("v_add_f32 %s, %s, %s" % (v(64 + 4 * T + q), v(64 + 4 * T + q), v(ACC + 4 * T + q)))
        for q in range(4):
            a("v_fma_f32 %s, v24, %s, %s" % (v(64 + 4 * T + q), v(64 + 4 * T + q), v(32 + 4 * T + q)))
        for q in range(2):
            a("v_cvt_pk_bf16_f32 %s, %s, %s" % (v(80 + 2 * T + q), v(64 + 4 * T + 2 * q), v(64 + 4 * T + 2 * q + 1)))
    for T in range(4):
        if T:
            a("v_xor_b32 v9, %d, v6" % (32 * T))
        a("ds_write_b64 %s, %s" % (v(9 if T else 6), v(80 + 2 * T, 2)))
    a("s_waitcnt lgkmcnt(0)")
    a("ds_read_b128 v[16:19], v8")
    a("ds_read_b128 v[20:23], v8 offset:1024")
    a("s_waitcnt lgkmcnt(1)")
    a("buffer_store_dwordx4 v[16:19], v7, %s, 0 offen" % s(R_O, 4))
    a("s_movk_i32 s6, 10240")
    a("s_waitcnt lgkmcnt(0)")
    a("buffer_store_dwordx4 v[20:23], v7, %s, s6 offen" % s(R_O, 4))
    stamp(a, 7, cfg)
    a("s_endpgm")


from conv import conv


def kernel_desc(name, nv=256, ns=102):
    return """.section .rodata,"a"
.p2align 6
.amdhsa_kernel %s
  .amdhsa_next_free_vgpr %d
  .amdhsa_next_free_sgpr %d
  .amdhsa_accum_offset %d
  .amdhsa_group_segment_fixed_size 0
  .amdhsa_kernarg_size 128
  .amdhsa_user_sgpr_count 2
  .amdhsa_user_sgpr_kernarg_segment_ptr 1
  .amdhsa_system_sgpr_workgroup_id_x 1
.end_amdhsa_kernel
""" % (name, nv, ns, (nv + 3) // 4 * 4)


def head(name):
    return ".text\n.globl %s\n.p2align 8\n.type %s,@function\n%s:\n" % (name, name, name)


def build(cfg):
    fused = cfg["fused"]
    hdr = open("cdna_kernels/%s.s.ref" % BASE).read().split("; Override launch")[0]
    a = Asm()
    END = "L_END"
    prologue(a, cfg, END)
    a("s_cmp_ge_u32 %s, 22" % s(S_J))
    a("s_cbranch_scc1 L_CONV")
    srd(a, R_X, P_U, X_SZ)
    srd(a, R_W1, P_W1, W_SZ)
    ffn_ids(a)
    srd(a, R_W2, P_W2, W_SZ)
    a("s_cmp_ge_u32 %s, 4" % s(S_W))
    a("s_cbranch_scc1 L_G1LD")
    srd(a, R_H, P_WS, H_SZ)
    srd(a, R_G, P_WS, G_SZ, G_OFF)
    srd(a, R_D, P_DBG, 256)
    g1_compute(a, cfg)
    stamp(a, 1, cfg)
    if fused:
        g1_publish(a, cfg, "L_G1DONE")
    a.label("L_G1DONE")
    stamp(a, 2, cfg)
    srd(a, R_H, P_WS, H_SZ)
    srd(a, R_G, P_WS, G_SZ, G_OFF)
    if fused:
        a("s_cmp_ge_u32 %s, 20" % s(S_J))
        a("s_cbranch_scc1 L_GATE")
        srd(a, R_A, P_WS, A_SZ, A_OFF)
        srd(a, R_O, P_OUT, X_SZ)
        g2(a, cfg)
    else:
        a("s_cmp_ge_u32 %s, 20" % s(S_J))
        a("s_cbranch_scc1 L_GATE")
        a("s_endpgm")
    a.label("L_G1LD")
    g1_loader(a, cfg, "L_G1DONE")
    a.label("L_GATE")
    gate(a, cfg)
    a.label("L_CONV")
    conv(a, cfg, sys.modules[__name__])
    a.label(END)
    a("s_endpgm")
    a.pad(cfg.get("verbose"))
    out = hdr
    if fused:
        out += "; @launch grid=(256,1,1) block=(512,1,1) lds=163840\n"
        out += '.amdgcn_target "amdgcn-amd-amdhsa--gfx950"\n'
        out += head(NAME) + a.text() + kernel_desc(NAME)
        return out
    b = Asm()
    prologue(b, cfg, "M_END")
    b("s_cmp_ge_u32 %s, 20" % s(S_J))
    b("s_cbranch_scc1 M_END")
    g2_ids(b)
    srd(b, R_W2, P_W2, W_SZ)
    srd(b, R_H, P_WS, H_SZ)
    srd(b, R_G, P_WS, G_SZ, G_OFF)
    srd(b, R_A, P_WS, A_SZ, A_OFF)
    srd(b, R_O, P_OUT, X_SZ)
    b.uid = 1000
    g2(b, cfg)
    b.label("M_END")
    b("s_endpgm")
    b.pad(cfg.get("verbose"))
    N2 = BASE + "_two_kernel"
    out += "; @launch kernel=%s grid=(256,1,1) block=(512,1,1) lds=163840\n" % NAME
    out += "; @launch kernel=%s grid=(160,1,1) block=(512,1,1) lds=163840\n" % N2
    out += '.amdgcn_target "amdgcn-amd-amdhsa--gfx950"\n'
    out += head(NAME) + a.text() + head(N2) + b.text() + kernel_desc(NAME) + kernel_desc(N2)
    return out


if __name__ == "__main__":
    cfg = {"fused": 1}
    outp = sys.argv[1]
    for kv in sys.argv[2:]:
        k, val = kv.split("=")
        cfg[k] = int(val)
    open(outp, "w").write(build(cfg))
```
